```python
import torch

def _softmax(x, axis=-1):
    return torch.softmax(x, dim=axis)
def _gelu(x):
    return torch.nn.functional.gelu(x, approximate="tanh")
def _silu(x):
    return torch.nn.functional.silu(x)
def _sigmoid(x):
    return torch.sigmoid(x)
def _layernorm(x, axis=-1, eps=1e-5):
    m = x.mean(dim=axis, keepdim=True)
    v = x.var(dim=axis, keepdim=True, unbiased=False)
    return (x - m) / torch.sqrt(v + eps)
def _scatter_add(tgt, idx, src, axis=0):
    return tgt.clone().index_add_(axis, idx, src)
def _segment_sum(src, seg, n):
    out = torch.zeros((n,) + src.shape[1:], dtype=src.dtype)
    return out.index_add_(0, seg, src)
def _pad(x, pw):
    flat = tuple(v for pair in reversed(pw) for v in pair)
    return torch.nn.functional.pad(x, flat)

kernel_name = 'concat_heads__ssm_conv_s5__grouped_kv_mqa__prompt'

def setup_inputs():

    _w = (lambda a: (lambda t: t.to(torch.bfloat16) if t.is_floating_point() else t)(torch.as_tensor(a)))
    def _A_setup():
        B, S, D = 1, 2048, 448
        P = D
        Lambda_re = -0.5 * (lambda _x: torch.exp(torch.as_tensor(_x)))((lambda *s: torch.randn(*s, dtype=torch.bfloat16) * 0.4)(P))
        Lambda_im = (lambda *s: torch.randn(*s, dtype=torch.bfloat16) * 0.8)(P) * 1.0
        B_re = (lambda *s: torch.randn(*s, dtype=torch.bfloat16) * 0.4)(P, D) * (D ** -0.5)
        B_im = (lambda *s: torch.randn(*s, dtype=torch.bfloat16) * 0.4)(P, D) * (D ** -0.5)
        C_re = (lambda *s: torch.randn(*s, dtype=torch.bfloat16) * 0.4)(D, P) * (P ** -0.5)
        C_im = (lambda *s: torch.randn(*s, dtype=torch.bfloat16) * 0.4)(D, P) * (P ** -0.5)
        log_dt = (lambda *s: torch.randn(*s, dtype=torch.bfloat16) * 0.4)(P) * 0.3 - 2.0
        Dskip = (lambda *s: torch.randn(*s, dtype=torch.bfloat16) * 0.1)(D)
        return {
            "x": _w((lambda *s: torch.randn(*s, dtype=torch.bfloat16) * 0.05)(B, S, D)),
            "Lambda_re": _w(Lambda_re),
            "Lambda_im": _w(Lambda_im),
            "B_re": _w(B_re),
            "B_im": _w(B_im),
            "C_re": _w(C_re),
            "C_im": _w(C_im),
            "log_dt": _w(log_dt),
            "Dskip": _w(Dskip),
        }
    _A_in = _A_setup()

    def _B_setup():
        B, S, D, H = 1, 2048, 448, 16
        Dh = D // H
        return {
            "x": _w((lambda *s: torch.randn(*s, dtype=torch.bfloat16) * 0.05)(B, S, D)),
            "wq": _w((lambda *s: torch.randn(*s, dtype=torch.bfloat16) * 1.6)(D, H * Dh)),
            "wk": _w((lambda *s: torch.randn(*s, dtype=torch.bfloat16) * 1.6)(D, Dh)),
            "wv": _w((lambda *s: torch.randn(*s, dtype=torch.bfloat16) * 0.05)(D, Dh)),
            "wo": _w((lambda *s: torch.randn(*s, dtype=torch.bfloat16) * 0.05)(H * Dh, D)),
        }
    _B_in = _B_setup()

    return {
        "A_x": _A_in["x"],
        "A_Lambda_re": _A_in["Lambda_re"],
        "A_Lambda_im": _A_in["Lambda_im"],
        "A_B_re": _A_in["B_re"],
        "A_B_im": _A_in["B_im"],
        "A_C_re": _A_in["C_re"],
        "A_C_im": _A_in["C_im"],
        "A_log_dt": _A_in["log_dt"],
        "A_Dskip": _A_in["Dskip"],
        "B_x": _B_in["x"],
        "B_wq": _B_in["wq"],
        "B_wk": _B_in["wk"],
        "B_wv": _B_in["wv"],
        "B_wo": _B_in["wo"],
    }

def reference(A_x, A_Lambda_re, A_Lambda_im, A_B_re, A_B_im, A_C_re, A_C_im, A_log_dt, A_Dskip, B_x, B_wq, B_wk, B_wv, B_wo):
    def _A_ref(x, Lambda_re, Lambda_im, B_re, B_im, C_re, C_im, log_dt, Dskip):
        Bsz, L, H = x.shape
        Lam = Lambda_re + 1j * Lambda_im
        Bmat = B_re + 1j * B_im
        Cmat = C_re + 1j * C_im
        dt = torch.exp(log_dt)
        Lam_bar = torch.exp(dt * Lam)
        B_bar = ((Lam_bar - 1.0) / Lam)[:, None] * Bmat
        Bu = torch.einsum("bld,pd->blp", x + 0j, B_bar)
        h = torch.zeros_like(Bu[:, 0, :])
        hs = []
        for t in range(L):
            h = Lam_bar[None, :] * h + Bu[:, t, :]
            hs.append(h)
        hseq = torch.stack(hs, 1)
        y = 2.0 * torch.einsum("blp,dp->bld", hseq, Cmat).real + x * Dskip[None, None, :]
        return y

    def _B_ref(x, wq, wk, wv, wo):
        B, S, D = x.shape
        H = 16
        Dh = D // H
        q = (lambda x, *d: x.permute(*d))((x @ wq).reshape(B, S, H, Dh), 0, 2, 1, 3)
        k = x @ wk
        v = x @ wv
        scores = torch.einsum("bhqd,bkd->bhqk", q, k) * (Dh ** -0.5)
        p = _softmax(scores, axis=-1)
        o = torch.einsum("bhqk,bkd->bhqd", p, v)
        return (lambda x, *d: x.permute(*d))(o, 0, 2, 1, 3).reshape(B, S, H * Dh) @ wo

    a = _A_ref(A_x, A_Lambda_re, A_Lambda_im, A_B_re, A_B_im, A_C_re, A_C_im, A_log_dt, A_Dskip)
    b = _B_ref(B_x, B_wq, B_wk, B_wv, B_wo)
    return torch.concatenate([a, b], axis=-1)
```

```python
import struct, math
def f2u(x):
    return "0x%08x" % struct.unpack('<I', struct.pack('<f', x))[0]
LOG2E = 1.4426950408889634
QSCALE = LOG2E / math.sqrt(28.0)
INV2PI = 1.0 / (2 * math.pi)

class Asm:
    def __init__(self):
        self.l = []
        self.kds = []
        self.uid = 0
    def __call__(self, s):
        for ln in s.strip('\n').split('\n'):
            ln = ln.strip()
            if ln: self.l.append('    ' + ln)
    def label(self, s): self.l.append(s + ':')
    def c(self, s): self.l.append('    ; ' + s)
    def newlabel(self, p='L'):
        self.uid += 1
        return f"{p}_{self.uid}"
    def begin(self, name):
        self.l += ['.text', f'.globl {name}', '.p2align 8', f'.type {name},@function', f'{name}:']
    def kd(self, name, nvgpr, nsgpr=100):
        acc = (nvgpr + 3) // 4 * 4
        self.kds.append(f""".p2align 6
.amdhsa_kernel {name}
  .amdhsa_next_free_vgpr {nvgpr}
  .amdhsa_next_free_sgpr {nsgpr}
  .amdhsa_accum_offset {acc}
  .amdhsa_group_segment_fixed_size 0
  .amdhsa_kernarg_size 136
  .amdhsa_user_sgpr_count 2
  .amdhsa_user_sgpr_kernarg_segment_ptr 1
  .amdhsa_system_sgpr_workgroup_id_x 1
.end_amdhsa_kernel""")
    def srd(self, d, base, size, add=0):
        if add:
            self(f"s_add_u32 s{d}, s{base}, {hex(add)}\ns_addc_u32 s{d+1}, s{base+1}, 0")
        else:
            self(f"s_mov_b32 s{d}, s{base}\ns_mov_b32 s{d+1}, s{base+1}")
        self(f"s_mov_b32 s{d+2}, {hex(size)}\ns_mov_b32 s{d+3}, 0x00020000")
    def text(self, header):
        return header + '\n.amdgcn_target "amdgcn-amd-amdhsa--gfx950"\n' + '\n'.join(self.l) + '\n.section .rodata,"a"\n' + '\n'.join(self.kds) + '\n'

def vr(a, n): return f"v[{a}:{a+n-1}]" if n > 1 else f"v{a}"
def sr(a, n): return f"s[{a}:{a+n-1}]" if n > 1 else f"s{a}"

HEADER = """; Kernarg layout for this problem (136 bytes, ptrs only, base s[0:1]):
;   offset 128: d_ws      268435456 bytes workspace"""

P_AX, P_LRE, P_LIM, P_BRE, P_BIM, P_CRE, P_CIM, P_LDT = 16, 18, 20, 22, 24, 26, 28, 30
P_DSK, P_BX, P_WQ, P_WK, P_WV, P_WO, P_OUT, P_DBG, P_WS = 32, 34, 36, 38, 40, 42, 44, 46, 48
def load_kernargs(a):
    a("""s_load_dwordx16 s[16:31], s[0:1], 0
         s_load_dwordx16 s[32:47], s[0:1], 64
         s_load_dwordx2 s[48:49], s[0:1], 128""")

QF_OFF = 0x000000
KV_OFF = 0x200000
OF_OFF = 0x280000
UB_OFF = 0x480000
PB_OFF = 0x800000
EB_OFF = 0x880000
HT_OFF = 0x900000
WS_USED = 0xD00000
XBYTES = 2048 * 896
WBYTES = 448 * 896
OUTBYTES = 2048 * 896 * 4

def lam_params(a, vlr, vli, vld, vzr, vzi, t0):
    a(f"""v_lshlrev_b32 v{vlr}, 16, v{vlr}
          v_lshlrev_b32 v{vli}, 16, v{vli}
          v_lshlrev_b32 v{vld}, 16, v{vld}
          v_mul_f32 v{vld}, {f2u(LOG2E)}, v{vld}
          v_exp_f32 v{vld}, v{vld}
          s_nop 0
          v_cvt_pk_bf16_f32 v{vld}, v{vld}, v{vld}
          v_and_b32 v{vld}, 0xffff0000, v{vld}
          v_mul_f32 v{vzr}, v{vld}, v{vlr}
          v_mul_f32 v{vzi}, v{vld}, v{vli}
          v_mul_f32 v{vzr}, {f2u(LOG2E)}, v{vzr}
          v_mul_f32 v{vzi}, {f2u(INV2PI)}, v{vzi}""")

def lam_pow(a, dr, di, vzr, vzi, n, t0):
    if n == 1:
        a(f"v_exp_f32 v{t0}, v{vzr}\nv_fract_f32 v{di}, v{vzi}")
    else:
        ns = n if isinstance(n, str) else f2u(float(n))
        a(f"""v_mul_f32 v{t0}, {ns}, v{vzr}
              v_mul_f32 v{di}, {ns}, v{vzi}
              v_exp_f32 v{t0}, v{t0}
              v_fract_f32 v{di}, v{di}""")
    a(f"""v_cos_f32 v{dr}, v{di}
          v_sin_f32 v{di}, v{di}
          s_nop 0
          v_mul_f32 v{dr}, v{dr}, v{t0}
          v_mul_f32 v{di}, v{di}, v{t0}""")
```

```python
import sys
from asmlib import *

MF = "v_mfma_f32_32x32x16_bf16"

def common_ids(a, nwg):
    a(f"""s_cmp_ge_u32 s2, {nwg}
          s_cbranch_scc1 {a.exit}""")
    load_kernargs(a)
    a("""v_lshrrev_b32 v2, 6, v0
         v_and_b32 v1, 63, v0
         v_readfirstlane_b32 s3, v2""")

def swz_dma_chunk(a, vc, vt):
    a(f"""s_and_b32 s8, s3, 1
          s_lshl_b32 s8, s8, 2
          v_lshrrev_b32 v{vt}, 4, v1
          v_add_u32 v{vt}, s8, v{vt}
          v_and_b32 v{vc}, 7, v1
          v_xor_b32 v{vc}, v{vc}, v{vt}
          v_lshlrev_b32 v{vc}, 4, v{vc}""")

def swz_read_addrs(a, vbase, vt, vt2):
    a(f"""v_bfe_u32 v{vt}, v1, 1, 3
          v_lshrrev_b32 v{vt2}, 5, v1
          v_xor_b32 v{vt}, v{vt}, v{vt2}
          v_and_b32 v{vt2}, 31, v1
          v_lshlrev_b32 v{vt2}, 7, v{vt2}""")
    for s in range(4):
        a(f"""v_xor_b32 v{vbase+s}, {2*s}, v{vt}
              v_lshl_add_u32 v{vbase+s}, v{vbase+s}, 4, v{vt2}""")

def tr_read_addr(a, vd, vt):
    a(f"""v_lshrrev_b32 v{vd}, 5, v1
          v_lshlrev_b32 v{vd}, 3, v{vd}
          v_bfe_u32 v{vt}, v1, 2, 2
          v_add_u32 v{vd}, v{vd}, v{vt}
          v_lshlrev_b32 v{vd}, 6, v{vd}
          v_bfe_u32 v{vt}, v1, 4, 1
          v_lshl_add_u32 v{vd}, v{vt}, 5, v{vd}
          v_and_b32 v{vt}, 3, v1
          v_lshl_add_u32 v{vd}, v{vt}, 3, v{vd}""")

def k1(a):
    name = 'k1_kernel'
    a.begin(name); a.exit = 'k1_exit'
    common_ids(a, 256)
    a("""s_and_b32 s4, s2, 7
         s_lshr_b32 s5, s2, 3
         v_lshrrev_b32 v2, 3, v1""")
    swz_dma_chunk(a, 3, 4)
    a("""s_lshl_b32 s8, s3, 3
         v_add_u32 v5, s8, v2
         v_mul_u32_u24 v5, 896, v5
         v_add_u32 v5, v5, v3
         s_lshl_b32 s9, s3, 10""")
    swz_read_addrs(a, 8, 6, 7)
    a("""s_and_b32 s10, s3, 3
         s_lshr_b32 s11, s3, 2
         s_waitcnt lgkmcnt(0)""")
    a.srd(64, P_WS, WS_USED)
    a("""s_cmp_ge_u32 s4, 4
         s_cbranch_scc1 k1_roleB""")
    a("""s_cmp_ge_u32 s5, 28
         s_cbranch_scc1 k1_exit
         s_mul_i32 s8, s5, 37
         s_lshr_b32 s8, s8, 8
         s_mul_i32 s7, s8, 7
         s_sub_u32 s7, s5, s7
         s_lshl_b32 s6, s4, 2
         s_add_u32 s6, s6, s8""")
    a.srd(52, P_AX, XBYTES); a.srd(56, P_BRE, WBYTES); a.srd(60, P_BIM, WBYTES)
    a.srd(68, P_LRE, 896); a.srd(72, P_LIM, 896); a.srd(76, P_LDT, 896)
    a("""s_lshl_b32 s8, s7, 6
         s_lshl_b32 s12, s11, 5
         s_add_u32 s8, s8, s12
         v_and_b32 v16, 31, v1
         v_add_u32 v16, s8, v16
         v_lshlrev_b32 v17, 1, v16
         buffer_load_ushort v18, v17, s[68:71], 0 offen
         buffer_load_ushort v19, v17, s[72:75], 0 offen
         buffer_load_ushort v20, v17, s[76:79], 0 offen""")
    a("""s_lshl_b32 s8, s11, 5
         s_lshl_b32 s12, s10, 2
         s_add_u32 s8, s8, s12
         v_lshrrev_b32 v4, 2, v2
         v_lshlrev_b32 v4, 4, v4
         v_and_b32 v6, 3, v2
         v_add3_u32 v4, v4, v6, s8
         v_mul_u32_u24 v4, 896, v4
         v_add_u32 v4, v4, v3
         s_mul_i32 s12, s6, 114688
         s_mul_i32 s13, s7, 57344""")
    def dmaA(kb):
        sl = kb % 5
        for n in range(4):
            a(f"s_add_u32 m0, s9, {sl*32768 + n*8192}")
            if n < 2:
                a(f"s_add_u32 s14, s12, {n*57344 + kb*128}\nbuffer_load_dwordx4 v4, s[52:55], s14 offen lds")
            else:
                a(f"s_add_u32 s14, s13, {kb*128}\nbuffer_load_dwordx4 v5, s[{56+4*(n-2)}:{59+4*(n-2)}], s14 offen lds")
    for kb in range(5): dmaA(kb)
    a("""s_lshl_b32 s8, s11, 12
         s_add_u32 s8, s8, 16384
         s_lshl_b32 s15, s10, 12""")
    for s in range(4):
        a(f"v_add_u32 v{12+s}, s8, v{8+s}\nv_add_u32 v{8+s}, s15, v{8+s}")
    DRE, DIM, FX, FR, FI = 32, 48, 64, 80, 96
    for r in range(32): a(f"v_mov_b32 v{DRE+r}, 0")
    waits = [16, 12, 12, 12, 8, 4, 0]
    for kb in range(7):
        a(f"s_waitcnt vmcnt({waits[kb]})\ns_barrier")
        if kb in (1, 2): dmaA(kb + 4)
        for s in range(4):
            a(f"""ds_read_b128 {vr(FX+4*s,4)}, v{8+s}
                  ds_read_b128 {vr(FR+4*s,4)}, v{12+s}
                  ds_read_b128 {vr(FI+4*s,4)}, v{12+s} offset:8192""")
        if kb == 0:
            lam_params(a, 18, 19, 20, 21, 22, 23)
            lam_pow(a, 24, 25, 21, 22, 1, 23)
            lam_pow(a, 26, 27, 21, 22, 16, 23)
            a("v_sub_f32 v28, 0, v25\nv_sub_f32 v29, 0, v27")
        for s in range(4):
            a(f"""s_waitcnt lgkmcnt({10-3*s})
                  {MF} {vr(DRE,16)}, {vr(FX+4*s,4)}, {vr(FR+4*s,4)}, {vr(DRE,16)}
                  s_waitcnt lgkmcnt({9-3*s})
                  {MF} {vr(DIM,16)}, {vr(FX+4*s,4)}, {vr(FI+4*s,4)}, {vr(DIM,16)}""")
        if kb < 6:
            d = 32768 if (kb % 5) != 4 else -4*32768
            for s in range(8):
                a(f"v_add_u32 v{8+s}, {hex(d & 0xffffffff)}, v{8+s}")
    a("s_nop 15")
    a("""s_lshl_b32 s8, s6, 2
         s_add_u32 s8, s8, s10
         s_mul_i32 s8, s8, 14
         s_lshl_b32 s12, s7, 1
         s_add_u32 s8, s8, s12
         s_add_u32 s8, s8, s11
         s_lshl_b32 s12, s8, 12
         s_lshl_b32 s13, s8, 9""")
    a(f"s_add_u32 s12, s12, {hex(UB_OFF)}\ns_add_u32 s13, s13, {hex(PB_OFF)}")
    a("v_lshlrev_b32 v6, 4, v1")
    for i in range(16):
        a(f"v_cvt_pk_bf16_f32 v{FX+i}, v{DRE+2*i}, v{DRE+2*i+1}")
    for i in range(4):
        a(f"buffer_store_dwordx4 {vr(FX+4*i,4)}, v6, s[64:67], s12 offen offset:{i*1024}")
    for r in range(1, 16):
        a(f"""v_fmac_f32 v{DRE+r}, v24, v{DRE+r-1}
              v_fmac_f32 v{DIM+r}, v24, v{DIM+r-1}
              v_fmac_f32 v{DRE+r}, v28, v{DIM+r-1}
              v_fmac_f32 v{DIM+r}, v25, v{DRE+r-1}""")
    a(f"""v_mov_b32 v30, v{DRE+15}
          v_mov_b32 v31, v{DIM+15}
          v_lshrrev_b32 v7, 5, v1
          s_lshl_b32 s8, s10, 1
          v_add_u32 v7, s8, v7
          v_and_b32 v2, 31, v1
          s_lshl_b32 s8, s11, 5
          v_add_u32 v2, s8, v2
          v_lshlrev_b32 v2, 3, v2
          v_add_u32 v2, 0x10000, v2
          v_lshl_add_u32 v3, v7, 9, v2
          ds_write_b64 v3, v[30:31]
          s_waitcnt lgkmcnt(0)
          s_barrier""")
    EJ = 112
    for j in range(8): a(f"ds_read_b64 {vr(EJ+2*j,2)}, v2 offset:{j*512}")
    a("v_mov_b32 v30, 0\nv_mov_b32 v31, 0\ns_waitcnt lgkmcnt(0)")
    for j in range(1, 8):
        pr, pi, cr, ci = EJ+2*j-2, EJ+2*j-1, EJ+2*j, EJ+2*j+1
        a(f"""v_cmp_eq_u32 vcc, {j}, v7
              v_fmac_f32 v{cr}, v26, v{pr}
              v_fmac_f32 v{ci}, v26, v{pi}
              v_cndmask_b32 v30, v30, v{pr}, vcc
              v_cndmask_b32 v31, v31, v{pi}, vcc
              v_fmac_f32 v{cr}, v29, v{pi}
              v_fmac_f32 v{ci}, v27, v{pr}""")
    a(f"""v_lshlrev_b32 v6, 3, v1
          buffer_store_dwordx2 v[30:31], v6, s[64:67], s13 offen
          s_cmp_lg_u32 s10, 0
          s_cbranch_scc1 k1_exit
          s_mul_i32 s8, s6, {448*8}
          s_add_u32 s8, s8, {hex(EB_OFF)}
          v_lshlrev_b32 v6, 3, v16
          buffer_store_dwordx2 {vr(EJ+14,2)}, v6, s[64:67], s8 offen
          s_endpgm""")
    a.label('k1_roleB')
    a("""s_sub_u32 s6, s4, 4
         s_lshl_b32 s6, s6, 2
         s_lshr_b32 s8, s5, 3
         s_add_u32 s6, s6, s8
         s_and_b32 s7, s5, 7""")
    a.srd(52, P_BX, XBYTES)
    a(f"""s_cmp_eq_u32 s11, 0
          s_cselect_b32 s56, s{P_WK}, s{P_WV}
          s_cselect_b32 s57, s{P_WK+1}, s{P_WV+1}
          s_cmp_eq_u32 s7, 7
          s_cselect_b32 s56, s56, s{P_WQ}
          s_cselect_b32 s57, s57, s{P_WQ+1}
          s_mov_b32 s58, {WBYTES}
          s_cselect_b32 s58, {448*56}, s58
          s_mov_b32 s59, 0x00020000
          s_cselect_b32 s15, 56, 896
          s_lshl_b32 s13, s7, 7
          s_lshl_b32 s8, s11, 6
          s_add_u32 s13, s13, s8
          s_cmp_eq_u32 s7, 7
          s_cselect_b32 s13, 0, s13
          s_lshl_b32 s60, s15, 6""")
    a("""s_lshl_b32 s8, s10, 4
         v_lshrrev_b32 v4, 2, v1
         v_add_u32 v4, s8, v4
         v_mul_lo_u32 v4, v4, s15
         v_and_b32 v6, 3, v1
         v_lshl_add_u32 v4, v6, 4, v4
         s_mul_i32 s12, s6, 114688""")
    def dmaB(kb):
        sl = kb % 6
        for n in range(2):
            a(f"""s_add_u32 m0, s9, {sl*24576 + n*8192}
                  s_add_u32 s14, s12, {n*57344 + kb*128}
                  buffer_load_dwordx4 v5, s[52:55], s14 offen lds""")
        a(f"""s_add_u32 m0, s9, {sl*24576 + 16384}
              s_nop 0
              buffer_load_dwordx4 v4, s[56:59], s13 offen lds
              s_add_u32 s13, s13, s60""")
    for kb in range(6): dmaB(kb)
    tr_read_addr(a, 12, 6)
    a("""s_lshl_b32 s8, s11, 12
         s_add_u32 s8, s8, 16384
         v_add_u32 v12, s8, v12
         s_lshl_b32 s8, s10, 12""")
    for s in range(4): a(f"v_add_u32 v{8+s}, s8, v{8+s}")
    D, FX, FW = 32, 64, 80
    for r in range(16): a(f"v_mov_b32 v{D+r}, 0")
    a("""s_cmp_eq_u32 s7, 7
         s_cselect_b32 s61, s11, 0""")
    waits = [15, 12, 12, 9, 6, 3, 0]
    for kb in range(7):
        a(f"s_waitcnt vmcnt({waits[kb]})\ns_barrier")
        if kb == 1: dmaB(6)
        for s in range(4):
            a(f"""ds_read_b128 {vr(FX+4*s,4)}, v{8+s}
                  ds_read_b64_tr_b16 {vr(FW+4*s,2)}, v12 offset:{s*1024}
                  ds_read_b64_tr_b16 {vr(FW+4*s+2,2)}, v12 offset:{s*1024+256}""")
        lv, le = a.newlabel('k1v'), a.newlabel('k1e')
        a(f"s_cmp_eq_u32 s61, 1\ns_cbranch_scc1 {lv}")
        for s in range(4):
            a(f"s_waitcnt lgkmcnt({9-3*s})\n{MF} {vr(D,16)}, {vr(FW+4*s,4)}, {vr(FX+4*s,4)}, {vr(D,16)}")
        a(f"s_branch {le}")
        a.label(lv)
        for s in range(4):
            a(f"s_waitcnt lgkmcnt({9-3*s})\n{MF} {vr(D,16)}, {vr(FX+4*s,4)}, {vr(FW+4*s,4)}, {vr(D,16)}")
        a.label(le)
        if kb < 6:
            d = 24576 if (kb % 6) != 5 else -5*24576
            for s in range(5):
                a(f"v_add_u32 v{8+s}, {hex(d & 0xffffffff)}, v{8+s}")
    a("""s_nop 15
         s_lshl_b32 s8, s6, 2
         s_add_u32 s12, s8, s10""")
    a("s_cmp_eq_u32 s7, 7\ns_cbranch_scc1 k1_kv")
    for r in range(16): a(f"v_mul_f32 v{D+r}, {f2u(QSCALE)}, v{D+r}")
    for i in range(8): a(f"v_cvt_pk_bf16_f32 v{FX+i}, v{D+2*i}, v{D+2*i+1}")
    a(f"""s_lshl_b32 s8, s7, 4
          s_lshl_b32 s13, s11, 3
          s_add_u32 s8, s8, s13
          v_lshrrev_b32 v2, 5, v1
          v_add_u32 v2, s8, v2
          v_and_b32 v3, 31, v1
          v_lshlrev_b32 v3, 4, v3
          s_lshl_b32 s13, s12, 11
          s_add_u32 s13, s13, {hex(QF_OFF)}""")
    for aa in range(4):
        a(f"""v_add_u32 v4, {2*aa}, v2
              v_mul_u32_u24 v5, 147, v4
              v_lshrrev_b32 v5, 10, v5
              v_mul_u32_u24 v6, 7, v5
              v_sub_u32 v6, v4, v6
              v_lshl_add_u32 v7, v5, 17, v3
              v_lshrrev_b32 v4, 2, v6
              v_lshl_add_u32 v7, v4, 10, v7
              v_and_b32 v4, 1, v6
              v_lshl_add_u32 v7, v4, 9, v7
              v_bfe_u32 v4, v6, 1, 1
              v_lshl_add_u32 v7, v4, 3, v7
              buffer_store_dwordx2 {vr(FX+2*aa,2)}, v7, s[64:67], s13 offen""")
    a("s_endpgm")
    a.label('k1_kv')
    for i in range(8): a(f"v_cvt_pk_bf16_f32 v{FX+i}, v{D+2*i}, v{D+2*i+1}")
    a(f"""s_lshl_b32 s13, s12, 12
          s_add_u32 s13, s13, {hex(KV_OFF)}
          v_lshlrev_b32 v7, 4, v1
          s_cmp_eq_u32 s11, 1
          s_cbranch_scc1 k1_v
          s_mov_b32 exec_lo, 0
          v_mov_b32 v{FX+6}, 0x3f803f80
          v_mov_b32 v{FX+7}, 0
          s_mov_b32 exec_lo, -1
          buffer_store_dwordx4 {vr(FX,4)}, v7, s[64:67], s13 offen
          buffer_store_dwordx4 {vr(FX+4,4)}, v7, s[64:67], s13 offen offset:1024
          s_endpgm""")
    a.label('k1_v')
    a("s_mov_b32 exec_lo, 0x10000000\ns_mov_b32 exec_hi, 0x10000000")
    for i in range(8): a(f"v_mov_b32 v{FX+i}, 0x3f803f80")
    a("s_mov_b32 exec_lo, 0xe0000000\ns_mov_b32 exec_hi, 0xe0000000")
    for i in range(8): a(f"v_mov_b32 v{FX+i}, 0")
    a(f"""s_mov_b64 exec, -1
          buffer_store_dwordx4 {vr(FX,4)}, v7, s[64:67], s13 offen offset:2048
          buffer_store_dwordx4 {vr(FX+4,4)}, v7, s[64:67], s13 offen offset:3072""")
    a.label('k1_exit')
    a("s_endpgm")
    a.kd(name, 128)

def k2(a):
    name = 'k2_kernel'
    a.begin(name); a.exit = 'k2_exit'
    common_ids(a, 512)
    a("""s_and_b32 s10, s3, 3
         s_lshr_b32 s11, s3, 2
         s_waitcnt lgkmcnt(0)""")
    a.srd(64, P_WS, WS_USED)
    a("s_cmp_ge_u32 s2, 256\ns_cbranch_scc1 k2_roleA")
    Q, O, SA, SB, P, K, V = 8, 16, 32, 48, 64, 72, 80
    a.srd(52, P_WS, 262144, add=KV_OFF)
    a(f"""s_lshr_b32 s6, s2, 4
          s_and_b32 s7, s2, 15
          s_lshl_b32 s7, s7, 2
          s_add_u32 s7, s7, s10
          s_lshl_b32 s8, s6, 6
          s_add_u32 s8, s8, s7
          s_lshl_b32 s8, s8, 11
          s_add_u32 s8, s8, {hex(QF_OFF)}
          v_lshlrev_b32 v2, 4, v1
          buffer_load_dwordx4 {vr(Q,4)}, v2, s[64:67], s8 offen
          buffer_load_dwordx4 {vr(Q+4,4)}, v2, s[64:67], s8 offen offset:1024
          s_lshl_b32 s9, s3, 11
          v_add_u32 v3, s9, v2
          s_lshl_b32 s8, s11, 13
          v_add_u32 v4, s8, v2
          s_mov_b32 s62, 0""")
    def dma(slot):
        a(f"""s_add_u32 m0, s9, {slot*16384}
              s_nop 0
              buffer_load_dwordx4 v3, s[52:55], s12 offen lds
              buffer_load_dwordx4 v3, s[52:55], s12 offen offset:1024 lds
              s_add_u32 s12, s12, 16384""")
    def rd(reg, tile, part):
        st, j = tile >> 1, tile & 1
        a(f"ds_read_b128 {vr(reg,4)}, v4 offset:{(st & 3)*16384 + j*4096 + part*1024}")
    a("s_mov_b32 s12, 0")
    for s in range(3): dma(s)
    a(f"""s_waitcnt vmcnt(6)
          s_mov_b32 exec_lo, 0
          v_mov_b32 v{Q+6}, 0
          v_mov_b32 v{Q+7}, 0
          s_mov_b32 exec_lo, -1""")
    a.label('k2_start')
    for r in range(16): a(f"v_mov_b32 v{O+r}, 0")
    for r in range(4): a(f"v_mov_b32 v{P+4+r}, 0")
    a("s_waitcnt vmcnt(4)\ns_barrier")
    rd(K, 0, 0); rd(K+4, 0, 1)
    a(f"""s_waitcnt lgkmcnt(0)
          {MF} {vr(SA,16)}, {vr(K,4)}, {vr(Q,4)}, 0
          {MF} {vr(SA,16)}, {vr(K+4,4)}, {vr(Q+4,4)}, {vr(SA,16)}""")
    rd(K, 1, 0); rd(V+4, 0, 3); rd(K+4, 1, 1); rd(V, 0, 2)
    a("s_nop 7\ns_mov_b32 s13, 4")
    a.l.append('.p2align 6')
    a.label('k2_loop')
    def G(S, g):
        for r in range(4): a(f"v_exp_f32 v{S+4*g+r}, v{S+4*g+r}")
        a(f"v_cvt_pk_bf16_f32 v{P+2*g}, v{S+4*g}, v{S+4*g+1}\nv_cvt_pk_bf16_f32 v{P+2*g+1}, v{S+4*g+2}, v{S+4*g+3}")
    for i in range(8):
        S, Sn = (SA, SB) if i % 2 == 0 else (SB, SA)
        if i % 2 == 0:
            a("s_waitcnt vmcnt(2) lgkmcnt(2)\ns_barrier")
            dma(((i >> 1) + 3) & 3)
        a(f"s_waitcnt lgkmcnt(3)\n{MF} {vr(Sn,16)}, {vr(K,4)}, {vr(Q,4)}, 0")
        rd(K, i+2, 0)
        G(S, 0)
        a(f"s_waitcnt lgkmcnt(3)\n{MF} {vr(O,16)}, {vr(V+4,4)}, {vr(P+4,4)}, {vr(O,16)}")
        rd(V+4, i, 3)
        G(S, 1)
        a(f"s_waitcnt lgkmcnt(3)\n{MF} {vr(Sn,16)}, {vr(K+4,4)}, {vr(Q+4,4)}, {vr(Sn,16)}")
        rd(K+4, i+2, 1)
        G(S, 2)
        a(f"s_waitcnt lgkmcnt(3)\n{MF} {vr(O,16)}, {vr(V,4)}, {vr(P,4)}, {vr(O,16)}")
        rd(V, i+1, 2)
        G(S, 3)
    a(f"""s_sub_u32 s13, s13, 1
          s_cmp_lg_u32 s13, 0
          s_cbranch_scc1 k2_loop
          s_waitcnt lgkmcnt(0)
          {MF} {vr(O,16)}, {vr(V+4,4)}, {vr(P+4,4)}, {vr(O,16)}
          s_lshl_b32 s8, s10, 12
          s_add_u32 s8, s8, 65536
          v_add_u32 v5, s8, v2
          s_nop 15
          s_cmp_eq_u32 s11, 0
          s_cbranch_scc1 k2_lo""")
    for i in range(4): a(f"ds_write_b128 v5, {vr(O+4*i,4)} offset:{i*1024}")
    a("""s_waitcnt lgkmcnt(0)
         s_barrier
         s_endpgm""")
    a.label('k2_lo')
    a("s_barrier")
    for i in range(4): a(f"ds_read_b128 {vr(SA+4*i,4)}, v5 offset:{i*1024}")
    a("s_waitcnt lgkmcnt(0)")
    for r in range(16): a(f"v_add_f32 v{O+r}, v{O+r}, v{SA+r}")
    a(f"""v_mov_b32 v6, v{O+12}
          v_mov_b32 v7, v{O+12}
          s_nop 1
          v_permlane32_swap_b32 v6, v7
          s_nop 1
          v_rcp_f32 v7, v7
          s_nop 0""")
    for r in range(16): a(f"v_mul_f32 v{O+r}, v{O+r}, v7")
    for i in range(8): a(f"v_cvt_pk_bf16_f32 v{P+i}, v{O+2*i}, v{O+2*i+1}")
    a(f"""s_mul_i32 s8, s6, 7
          v_lshrrev_b32 v2, 5, v1
          v_add_u32 v2, s8, v2
          v_and_b32 v3, 31, v1
          v_lshlrev_b32 v3, 4, v3
          s_mul_i32 s13, s7, {28*1024}
          s_add_u32 s13, s13, {hex(OF_OFF)}""")
    for aa in range(4):
        if aa == 3: a("s_mov_b32 exec_hi, 0")
        a(f"""v_add_u32 v4, {2*aa}, v2
              v_lshrrev_b32 v5, 1, v4
              v_lshl_add_u32 v7, v5, 9, v3
              v_and_b32 v4, 1, v4
              v_lshl_add_u32 v7, v4, 3, v7
              buffer_store_dwordx2 {vr(P+2*aa,2)}, v7, s[64:67], s13 offen""")
    a("s_endpgm")
    a.label('k2_roleA')
    a("""s_sub_u32 s4, s2, 256
         s_cmp_ge_u32 s4, 224
         s_cbranch_scc1 k2_exit
         s_cmp_ge_u32 s3, 4
         s_cbranch_scc1 k2_exit
         s_mul_i32 s6, s4, 4682
         s_lshr_b32 s6, s6, 16
         s_mul_i32 s7, s6, 14
         s_sub_u32 s7, s4, s7""")
    a.srd(68, P_LRE, 896); a.srd(72, P_LIM, 896); a.srd(76, P_LDT, 896)
    U, EJ, HR, HI = 32, 48, 80, 96
    a(f"""s_lshl_b32 s8, s7, 5
          v_and_b32 v16, 31, v1
          v_add_u32 v16, s8, v16
          v_lshlrev_b32 v17, 1, v16
          buffer_load_ushort v18, v17, s[68:71], 0 offen
          buffer_load_ushort v19, v17, s[72:75], 0 offen
          buffer_load_ushort v20, v17, s[76:79], 0 offen
          s_lshl_b32 s5, s6, 2
          s_add_u32 s5, s5, s3
          s_mul_i32 s8, s5, 14
          s_add_u32 s8, s8, s7
          s_lshl_b32 s12, s8, 12
          s_lshl_b32 s13, s8, 9
          s_add_u32 s12, s12, {hex(UB_OFF)}
          s_add_u32 s13, s13, {hex(PB_OFF)}
          v_lshlrev_b32 v6, 3, v16
          s_mov_b32 s14, {hex(EB_OFF)}""")
    for j in range(15):
        a(f"buffer_load_dwordx2 {vr(EJ+2*j,2)}, v6, s[64:67], s14 offen\ns_add_u32 s14, s14, {448*8}")
    a("v_lshlrev_b32 v6, 3, v1\nbuffer_load_dwordx2 v[30:31], v6, s[64:67], s13 offen\nv_lshlrev_b32 v6, 4, v1")
    for i in range(4): a(f"buffer_load_dwordx4 {vr(U+4*i,4)}, v6, s[64:67], s12 offen offset:{i*1024}")
    a("s_waitcnt vmcnt(20)")
    lam_params(a, 18, 19, 20, 21, 22, 23)
    lam_pow(a, 24, 25, 21, 22, 1, 23)
    lam_pow(a, 26, 27, 21, 22, 128, 23)
    a("""v_lshrrev_b32 v2, 5, v1
         s_lshl_b32 s8, s3, 1
         v_add_u32 v2, s8, v2
         v_lshlrev_b32 v2, 4, v2
         v_cvt_f32_u32 v2, v2""")
    lam_pow(a, 8, 9, 21, 22, 'v2', 23)
    a("""v_add_f32 v3, -1.0, v24
         v_mul_f32 v4, v18, v18
         v_fmac_f32 v4, v19, v19
         v_rcp_f32 v4, v4
         v_mul_f32 v10, v3, v18
         v_fmac_f32 v10, v25, v19
         v_mul_f32 v11, v25, v18
         v_mul_f32 v5, v3, v19
         v_sub_f32 v11, v11, v5
         v_add_f32 v4, v4, v4
         v_mul_f32 v10, v10, v4
         v_mul_f32 v11, v11, v4
         v_sub_f32 v28, 0, v25
         v_sub_f32 v29, 0, v27
         v_sub_f32 v12, 0, v10
         v_sub_f32 v13, 0, v11
         v_mov_b32 v14, 0
         v_mov_b32 v15, 0
         s_waitcnt vmcnt(5)""")
    for j in range(15):
        a(f"""s_cmp_le_u32 s6, {j}
              s_cbranch_scc1 k2_hdone
              v_fmac_f32 v{EJ+2*j}, v26, v14
              v_fmac_f32 v{EJ+2*j+1}, v26, v15
              v_fmac_f32 v{EJ+2*j}, v29, v15
              v_fmac_f32 v{EJ+2*j+1}, v27, v14
              v_mov_b32 v14, v{EJ+2*j}
              v_mov_b32 v15, v{EJ+2*j+1}""")
    a.label('k2_hdone')
    a("""s_waitcnt vmcnt(0)
         v_fmac_f32 v30, v8, v14
         v_fmac_f32 v31, v8, v15
         v_mul_f32 v3, v9, v15
         v_sub_f32 v30, v30, v3
         v_fmac_f32 v31, v9, v14""")
    for r in range(16):
        src_r, src_i = U + r//2, U + 8 + r//2
        if r % 2 == 0:
            a(f"v_lshlrev_b32 v{HR+r}, 16, v{src_r}\nv_lshlrev_b32 v{HI+r}, 16, v{src_i}")
        else:
            a(f"v_and_b32 v{HR+r}, 0xffff0000, v{src_r}\nv_and_b32 v{HI+r}, 0xffff0000, v{src_i}")
        pr, pi = (30, 31) if r == 0 else (HR+r-1, HI+r-1)
        a(f"""v_fmac_f32 v{HR+r}, v24, v{pr}
              v_fmac_f32 v{HI+r}, v24, v{pi}
              v_fmac_f32 v{HR+r}, v28, v{pi}
              v_fmac_f32 v{HI+r}, v25, v{pr}""")
    OR_, OI_ = 48, 64
    for r in range(16):
        a(f"""v_mul_f32 v{OR_+r}, v10, v{HR+r}
              v_mul_f32 v{OI_+r}, v12, v{HI+r}
              v_fmac_f32 v{OR_+r}, v13, v{HI+r}
              v_fmac_f32 v{OI_+r}, v13, v{HR+r}""")
    for i in range(16): a(f"v_cvt_pk_bf16_f32 v{U+i}, v{OR_+2*i}, v{OR_+2*i+1}")
    a(f"""s_mul_i32 s12, s5, 57344
          s_add_u32 s12, s12, {hex(HT_OFF)}
          s_add_u32 s13, s12, {448*64}
          v_lshrrev_b32 v2, 5, v1
          v_lshlrev_b32 v2, 5, v2
          v_lshl_add_u32 v2, v16, 6, v2
          buffer_store_dwordx4 {vr(U,4)}, v2, s[64:67], s12 offen
          buffer_store_dwordx4 {vr(U+4,4)}, v2, s[64:67], s12 offen offset:16
          buffer_store_dwordx4 {vr(U+8,4)}, v2, s[64:67], s13 offen
          buffer_store_dwordx4 {vr(U+12,4)}, v2, s[64:67], s13 offen offset:16""")
    a.label('k2_exit')
    a("s_endpgm")
    a.kd(name, 128)

def k3(a):
    name = 'k3_kernel'
    a.begin(name); a.exit = 'k3_exit'
    common_ids(a, 512)
    a("""s_and_b32 s4, s2, 7
         s_bfe_u32 s5, s2, 0x50003
         s_cmp_ge_u32 s5, 28
         s_cbranch_scc1 k3_exit
         s_mul_i32 s8, s5, 37
         s_lshr_b32 s8, s8, 8
         s_mul_i32 s7, s8, 7
         s_sub_u32 s7, s5, s7
         s_lshl_b32 s6, s4, 2
         s_add_u32 s6, s6, s8
         s_and_b32 s10, s3, 1
         s_lshr_b32 s11, s3, 1
         s_lshl_b32 s9, s3, 11
         s_lshl_b32 s15, s3, 10""")
    a("""v_lshlrev_b32 v2, 4, v1
         s_lshl_b32 s8, s10, 11
         v_add_u32 v3, s8, v2""")
    tr_read_addr(a, 12, 6)
    a("""v_lshrrev_b32 v13, 5, v1
         v_mul_u32_u24 v13, 14336, v13
         v_and_b32 v6, 31, v1
         v_lshl_add_u32 v13, v6, 2, v13
         s_lshl_b32 s8, s6, 1
         s_add_u32 s8, s8, s10
         s_mul_i32 s60, s8, 114688
         s_lshl_b32 s8, s7, 1
         s_add_u32 s8, s8, s11
         s_lshl_b32 s61, s8, 7
         s_add_u32 s60, s60, s61
         s_waitcnt lgkmcnt(0)""")
    a.srd(64, P_WS, WS_USED); a.srd(68, P_OUT, OUTBYTES)
    D, FA, FB = 32, 64, 80
    def store(extra):
        a("s_nop 15")
        for r in range(16):
            row = 8*(r//4) + r % 4
            a(f"s_add_u32 s14, s60, {row*3584 + extra}\nbuffer_store_dword v{D+r}, v13, s[68:71], s14 offen")
        a("s_endpgm")
    a("s_cmp_ge_u32 s2, 256\ns_cbranch_scc1 k3_roleB")
    a.srd(52, P_CRE, WBYTES); a.srd(56, P_CIM, WBYTES); a.srd(72, P_AX, XBYTES); a.srd(76, P_DSK, 896)
    a("""v_lshrrev_b32 v14, 5, v1
         v_mul_u32_u24 v14, 3584, v14
         v_and_b32 v6, 31, v1
         v_lshl_add_u32 v14, v6, 1, v14
         v_lshlrev_b32 v15, 1, v6
         s_lshl_b32 s8, s6, 1
         s_add_u32 s8, s8, s10
         s_mul_i32 s12, s8, 28672
         s_lshr_b32 s13, s61, 1
         s_add_u32 s12, s12, s13
         buffer_load_ushort v16, v15, s[76:79], s13 offen""")
    for r in range(16):
        row = 8*(r//4) + r % 4
        a(f"s_add_u32 s14, s12, {row*896}\nbuffer_load_ushort v{D+r}, v14, s[72:75], s14 offen")
    a("v_lshrrev_b32 v2, 3, v1")
    swz_dma_chunk(a, 4, 6)
    a(f"""s_lshl_b32 s8, s3, 3
          v_add_u32 v5, s8, v2
          v_mul_u32_u24 v5, 896, v5
          v_add_u32 v5, v5, v4
          s_lshl_b32 s8, s6, 1
          s_add_u32 s8, s8, s11
          s_mul_i32 s12, s8, 57344
          s_add_u32 s12, s12, {hex(HT_OFF)}
          s_mul_i32 s13, s7, 57344""")
    def dmaA(kb):
        sl = kb % 5
        srd = "s[52:55]" if kb < 7 else "s[56:59]"
        a(f"""s_add_u32 m0, s9, {sl*16384}
              s_add_u32 s14, s12, {kb*4096}
              buffer_load_dwordx4 v3, s[64:67], s14 offen lds
              buffer_load_dwordx4 v3, s[64:67], s14 offen offset:1024 lds
              s_add_u32 m0, s15, {sl*16384 + 8192}
              s_add_u32 s14, s13, {(kb%7)*128}
              buffer_load_dwordx4 v5, {srd}, s14 offen lds
              s_add_u32 m0, s15, {sl*16384 + 8192 + 4096}
              s_add_u32 s14, s13, {(kb%7)*128 + 32*896}
              buffer_load_dwordx4 v5, {srd}, s14 offen lds""")
    for kb in range(5): dmaA(kb)
    swz_read_addrs(a, 8, 6, 7)
    a("""s_lshl_b32 s8, s11, 12
         s_add_u32 s8, s8, 8192""")
    for s in range(4): a(f"v_add_u32 v{8+s}, s8, v{8+s}")
    a("""s_lshl_b32 s8, s10, 12
         v_add_u32 v12, s8, v12
         s_waitcnt vmcnt(20)
         v_lshlrev_b32 v16, 16, v16""")
    for r in range(16): a(f"v_lshlrev_b32 v{D+r}, 16, v{D+r}\nv_mul_f32 v{D+r}, v{D+r}, v16")
    NB = 14
    for kb in range(NB):
        allowed = 16 if kb == 0 else 4 * min(3, NB-1-kb)
        a(f"s_waitcnt vmcnt({allowed})\ns_barrier")
        if kb >= 1 and kb + 4 < NB: dmaA(kb + 4)
        sl = kb % 5
        if sl == 4:
            for s in range(5): a(f"v_add_u32 v{17+s}, 0x10000, v{8+s}")
        base, off = (8, sl*16384) if sl < 4 else (17, 0)
        for s in range(4):
            a(f"""ds_read_b64_tr_b16 {vr(FA+4*s,2)}, v{base+4} offset:{off + s*1024}
                  ds_read_b64_tr_b16 {vr(FA+4*s+2,2)}, v{base+4} offset:{off + s*1024+256}
                  ds_read_b128 {vr(FB+4*s,4)}, v{base+s} offset:{off}""")
        for s in range(4):
            a(f"s_waitcnt lgkmcnt({9-3*s})\n{MF} {vr(D,16)}, {vr(FA+4*s,4)}, {vr(FB+4*s,4)}, {vr(D,16)}")
    store(0)
    a.label('k3_roleB')
    a.srd(52, P_WO, WBYTES)
    a(f"""s_lshl_b32 s8, s3, 4
          v_lshrrev_b32 v5, 2, v1
          v_add_u32 v5, s8, v5
          v_mul_u32_u24 v5, 896, v5
          v_and_b32 v6, 3, v1
          v_lshl_add_u32 v5, v6, 4, v5
          s_lshl_b32 s8, s6, 1
          s_add_u32 s8, s8, s11
          s_mul_i32 s12, s8, 28672
          s_add_u32 s12, s12, {hex(OF_OFF)}
          s_lshl_b32 s13, s7, 7""")
    def dmaB(kb):
        sl = kb % 5
        a(f"""s_add_u32 m0, s9, {sl*16384}
              s_add_u32 s14, s12, {kb*4096}
              buffer_load_dwordx4 v3, s[64:67], s14 offen lds
              buffer_load_dwordx4 v3, s[64:67], s14 offen offset:1024 lds
              s_add_u32 m0, s15, {sl*16384 + 8192}
              s_add_u32 s14, s13, {kb*57344}
              buffer_load_dwordx4 v5, s[52:55], s14 offen lds
              s_add_u32 m0, s15, {sl*16384 + 8192 + 4096}
              s_add_u32 s14, s13, {kb*57344 + 64}
              buffer_load_dwordx4 v5, s[52:55], s14 offen lds""")
    for kb in range(5): dmaB(kb)
    a("""s_lshl_b32 s8, s11, 12
         s_add_u32 s8, s8, 8192
         v_add_u32 v12, s8, v12
         s_lshl_b32 s8, s10, 12
         v_add_u32 v8, s8, v2
         v_add_u32 v17, 0x10000, v8
         v_add_u32 v18, 0x10000, v12""")
    for r in range(16): a(f"v_mov_b32 v{D+r}, 0")
    NB = 7
    for kb in range(NB):
        allowed = 16 if kb == 0 else 4 * min(3, NB-1-kb)
        a(f"s_waitcnt vmcnt({allowed})\ns_barrier")
        if kb >= 1 and kb + 4 < NB: dmaB(kb + 4)
        sl = kb % 5
        va, vw, off = (8, 12, sl*16384) if sl < 4 else (17, 18, 0)
        for s in range(4):
            a(f"""ds_read_b128 {vr(FA+4*s,4)}, v{va} offset:{off + s*1024}
                  ds_read_b64_tr_b16 {vr(FB+4*s,2)}, v{vw} offset:{off + s*1024}
                  ds_read_b64_tr_b16 {vr(FB+4*s+2,2)}, v{vw} offset:{off + s*1024+256}""")
        for s in range(4):
            a(f"s_waitcnt lgkmcnt({9-3*s})\n{MF} {vr(D,16)}, {vr(FA+4*s,4)}, {vr(FB+4*s,4)}, {vr(D,16)}")
    store(448*4)
    a.label('k3_exit')
    a("s_endpgm")
    a.kd(name, 128)

if __name__ == '__main__':
    a = Asm()
    k1(a); k2(a); k3(a)
    hdr = HEADER + """
; @launch kernel=k1_kernel grid=(256,1,1) block=(512,1,1) lds=163840
; @launch kernel=k2_kernel grid=(512,1,1) block=(512,1,1) lds=81920
; @launch kernel=k3_kernel grid=(512,1,1) block=(256,1,1) lds=81920"""
    out = sys.argv[1] if len(sys.argv) > 1 else 'concat_heads__ssm_conv_s5__grouped_kv_mqa__prompt.s'
    open(out, 'w').write(a.text(hdr))
```
